```python
import torch

def _softmax(x, axis=-1):
    return torch.softmax(x, dim=axis)
def _gelu(x):
    return torch.nn.functional.gelu(x, approximate="tanh")
def _silu(x):
    return torch.nn.functional.silu(x)
def _sigmoid(x):
    return torch.sigmoid(x)
def _layernorm(x, axis=-1, eps=1e-5):
    m = x.mean(dim=axis, keepdim=True)
    v = x.var(dim=axis, keepdim=True, unbiased=False)
    return (x - m) / torch.sqrt(v + eps)
def _scatter_add(tgt, idx, src, axis=0):
    return tgt.clone().index_add_(axis, idx, src)
def _segment_sum(src, seg, n):
    out = torch.zeros((n,) + src.shape[1:], dtype=src.dtype)
    return out.index_add_(0, seg, src)
def _pad(x, pw):
    flat = tuple(v for pair in reversed(pw) for v in pair)
    return torch.nn.functional.pad(x, flat)

kernel_name = 'interleave_layers__linear_attn_block__dense_activation_silu__prompt'

def setup_inputs():

    _w = (lambda a: (lambda t: t.to(torch.bfloat16) if t.is_floating_point() else t)(torch.as_tensor(a)))
    def _A_setup():
        B, S, D = 1, 2048, 512
        return {
            "x": _w((lambda *s: torch.randn(*s, dtype=torch.bfloat16) * 0.05)(B, S, D)),
            "wqkv": _w((lambda *s: torch.randn(*s, dtype=torch.bfloat16) * 0.05)(D, 3 * D)),
            "wo": _w((lambda *s: torch.randn(*s, dtype=torch.bfloat16) * 0.05)(D, D)),
        }
    _A_in = _A_setup()

    def _B_setup():
        B, S, D, F = 1, 2048, 512, 1376
        return {
            "x": _w((lambda *s: torch.randn(*s, dtype=torch.bfloat16) * 0.05)(B, S, D)),
            "w1": _w((lambda *s: torch.randn(*s, dtype=torch.bfloat16) * 0.8)(D, F) * (D ** -0.5)),
            "w2": _w((lambda *s: torch.randn(*s, dtype=torch.bfloat16) * 0.8)(F, D) * (F ** -0.5)),
        }
    _B_in = _B_setup()

    return {
        "A_x": _A_in["x"],
        "A_wqkv": _A_in["wqkv"],
        "A_wo": _A_in["wo"],
        "B_x": _B_in["x"],
        "B_w1": _B_in["w1"],
        "B_w2": _B_in["w2"],
    }

def reference(A_x, A_wqkv, A_wo, B_x, B_w1, B_w2):
    def _A_ref(x, wqkv, wo):
        B, S, D = x.shape
        H = 32; Dh = D // H
        qkv = (lambda x, *d: x.permute(*d))((x @ wqkv).reshape(B, S, 3, H, Dh), 2, 0, 3, 1, 4)
        q, k, v = qkv[0], qkv[1], qkv[2]
        phi = lambda t: torch.where(t > 0, t + 1, torch.exp(t)) + 1e-6
        pq, pk = phi(q), phi(k)
        kv = torch.einsum("bhsd,bhse->bhde", pk, v)
        z = torch.einsum("bhsd->bhd", pk)
        num = torch.einsum("bhqd,bhde->bhqe", pq, kv)
        den = torch.einsum("bhqd,bhd->bhq", pq, z)[..., None] + 1e-6
        o = num / den
        return (lambda x, *d: x.permute(*d))(o, 0, 2, 1, 3).reshape(B, S, D) @ wo

    def _B_ref(x, w1, w2):
        h = torch.einsum("bsd,df->bsf", x, w1)
        h = _silu(h)
        out = torch.einsum("bsf,fd->bsd", h, w2)
        return out

    x = A_x
    x = x + _A_ref(_layernorm(x, axis=-1), A_wqkv, A_wo)
    x = x + _B_ref(_layernorm(x, axis=-1), B_w1, B_w2)
    x = x + _A_ref(_layernorm(x, axis=-1), A_wqkv, A_wo)
    x = x + _B_ref(_layernorm(x, axis=-1), B_w1, B_w2)
    return x
```

```python
import re

TRANS = ('v_exp_f32','v_log_f32','v_rcp_f32','v_rsq_f32','v_sqrt_f32','v_sin_f32','v_cos_f32')

def regs_of(op):
    op = op.strip()
    op = op.lstrip('-')
    if op.startswith('abs(') : op = op[4:-1]
    if op.startswith('|'): op = op.strip('|')
    m = re.fullmatch(r'([vas])\[(\d+):(\d+)\]', op)
    if m:
        return {f'{m.group(1)}{i}' for i in range(int(m.group(2)), int(m.group(3))+1)}
    m = re.fullmatch(r'([vas])(\d+)', op)
    if m: return {op}
    if op in ('vcc','vcc_lo','vcc_hi'): return {'vcc'}
    if op in ('exec','exec_lo','exec_hi'): return {'exec'}
    if op == 'm0': return {'m0'}
    return set()

class Ins:
    def __init__(self, text):
        self.text = text
        t = text.split(';')[0].strip()
        self.label = t.endswith(':')
        self.defs=set(); self.uses=set(); self.cls='other'; self.srcc=set(); self.ab=set(); self.mn=''
        if self.label or not t or t.startswith('.'):
            self.cls = 'label' if self.label else 'none'
            return
        parts = t.split(None,1)
        mn = parts[0]; self.mn = mn
        rest = parts[1] if len(parts)>1 else ''
        ops=[]; cur=''; depth=0
        for ch in rest:
            if ch in '[(': depth+=1
            if ch in '])': depth-=1
            if ch==',' and depth==0: ops.append(cur.strip()); cur=''
            else: cur+=ch
        if cur.strip(): ops.append(cur.strip())
        mods=''
        if ops:
            sp = ops[-1].split(None,1)
            ops[-1]=sp[0]; mods = sp[1] if len(sp)>1 else ''
        self.ops=ops; self.mods=mods
        R=lambda i: regs_of(ops[i]) if i<len(ops) else set()
        base = re.sub(r'_(e32|e64|dpp|sdwa)$','',mn)
        if mn.startswith('v_mfma'):
            self.cls='mfma'; self.defs=R(0); self.ab=R(1)|R(2); self.srcc=R(3); self.uses=self.ab|self.srcc
        elif mn.startswith('v_'):
            self.cls='valu'
            if base.startswith('v_cmp'):
                self.defs=R(0); self.uses=R(1)|R(2)
            elif base in ('v_permlane32_swap_b32','v_permlane16_swap_b32'):
                self.defs=R(0)|R(1); self.uses=R(0)|R(1); self.cls='perm'
            elif base in ('v_readfirstlane_b32','v_readlane_b32'):
                self.defs=R(0); self.uses=set().union(*[R(i) for i in range(1,len(ops))]); self.cls='rdlane'
            elif base in ('v_add_co_u32','v_addc_co_u32','v_sub_co_u32'):
                self.defs=R(0)|R(1); self.uses=set().union(*[R(i) for i in range(2,len(ops))])
            else:
                self.defs=R(0); self.uses=set().union(*[R(i) for i in range(1,len(ops))]) if len(ops)>1 else set()
                if base in ('v_fmac_f32','v_dot2c_f32_bf16'): self.uses|=R(0)
                if base=='v_cndmask_b32' and len(ops)==3: self.uses|={'vcc'}
            if base in TRANS: self.trans=True
            if base.startswith('v_dot'): self.dot=True
            if mn.endswith('_dpp') or 'row_' in mods or 'quad_perm' in mods: self.dpp=True
        elif mn.startswith('ds_'):
            self.cls='ds'
            if mn.startswith('ds_read'): self.defs=R(0); self.uses=R(1)
            else: self.uses=set().union(*[R(i) for i in range(len(ops))])
        elif mn.startswith('buffer_') or mn.startswith('global_'):
            self.cls='vmem'
            allr=[R(i) for i in range(len(ops))]
            islds = ' lds' in (' '+mods) or '_lds_' in mn
            if 'load' in mn and not islds:
                self.defs=R(0); self.uses=set().union(*allr[1:])
            else:
                self.uses=set().union(*allr)
                if islds: self.uses|={'m0'}; self.ldsdma=True
                if ('store' in mn) and ('x4' in mn or 'x3' in mn):
                    self.wstore = R(0) if mn.startswith('buffer_') else R(1)
        elif mn.startswith('s_'):
            self.cls='salu'
            if mn in ('s_nop',): self.nop=int(ops[0],0)+1
            elif mn.startswith('s_cmp') or mn.startswith('s_bitcmp') or mn in ('s_waitcnt','s_barrier','s_branch','s_endpgm','s_sleep','s_setprio') or mn.startswith('s_cbranch'):
                self.uses=set().union(*[R(i) for i in range(len(ops))]) if ops else set()
                if mn in ('s_cbranch_vccz','s_cbranch_vccnz'): self.uses|={'vcc'}
            else:
                self.defs=R(0); self.uses=set().union(*[R(i) for i in range(1,len(ops))]) if len(ops)>1 else set()
                if 'saveexec' in mn: self.defs|={'exec'}
    def states(self):
        if self.cls in ('label','none'): return 0
        return getattr(self,'nop',1)

def need(prod, cons):
    n=0
    isv = lambda i: i.cls in ('valu','perm','rdlane')
    vdefs = {r for r in prod.defs if r[0] in 'va' and r!='vcc'}
    sdefs = {r for r in prod.defs if r[0]=='s' or r=='vcc'}
    if isv(prod):
        if cons.cls=='mfma' and (vdefs & cons.uses): n=max(n,2)
        if cons.cls=='perm' and (vdefs & cons.uses): n=max(n,2)
        if getattr(cons,'dpp',False) and (vdefs & cons.uses): n=max(n,2)
        if cons.cls=='rdlane' and (vdefs & cons.uses): n=max(n,1)
        if getattr(prod,'trans',False) and isv(cons) and (vdefs & cons.uses): n=max(n,1)
        if getattr(prod,'dot',False) and (vdefs & (cons.uses|cons.defs)):
            same = getattr(cons,'dot',False) and cons.mn==prod.mn and not (vdefs & (regs_of(cons.ops[1])|regs_of(cons.ops[2])))
            if not same: n=max(n,3)
        if sdefs:
            if isv(cons) and (sdefs & cons.uses): n=max(n,4 if cons.cls=='rdlane' else 2)
            if cons.cls=='vmem' and (sdefs & cons.uses): n=max(n,5)
            if cons.cls=='salu' and (sdefs & cons.uses): n=max(n,4)
    if prod.cls=='mfma':
        if cons.cls=='mfma':
            if prod.defs & cons.ab: n=max(n,12)
            if prod.defs & cons.srcc and prod.defs!=cons.srcc: n=max(n,10)
            if (prod.defs & cons.defs) and prod.defs!=cons.srcc: n=max(n,10)
        elif cons.cls in ('valu','perm','rdlane','ds','vmem'):
            if prod.defs & (cons.uses|cons.defs): n=max(n,12)
            if isv(cons) and (prod.srcc & cons.defs): n=max(n,7)
    if prod.cls=='salu' and 'm0' in prod.defs and getattr(cons,'ldsdma',False): n=max(n,1)
    if prod.cls=='salu' and 'exec' in prod.defs and (cons.cls in('perm','mfma') or getattr(cons,'dpp',False)): n=max(n,4)
    ws=getattr(prod,'wstore',None)
    if ws and (ws & cons.defs): n=max(n,2)
    return n

class Prog:
    def __init__(self):
        self.lines=[]
    def __call__(self, text):
        for l in text.split('\n'):
            l=l.strip()
            if l: self.lines.append(l)
    def finalize(self):
        out=[]; hists=[[]]
        pending={}
        nn=0
        for l in self.lines:
            ins=Ins(l)
            if ins.cls=='label':
                name=l.split(':')[0].strip()
                hists += pending.pop(name,[])
                out.append(l); continue
            if ins.cls=='none':
                out.append(l); continue
            req=0
            for hist in hists:
                dist=0
                for p in reversed(hist):
                    r=need(p,ins)
                    if r-dist>req: req=r-dist
                    dist+=p.states()
                    if dist>=16: break
            while req>0:
                k=min(req,16); nop=Ins(f's_nop {k-1}'); out.append(f's_nop {k-1}')
                for h in hists: h.append(nop)
                req-=k; nn+=1
            out.append(l)
            for h in hists: h.append(ins)
            hists=[h[-20:] for h in hists]
            uniq=[]
            for h in hists:
                if not any(len(h)>=17 and len(u)>=17 and all(a is b for a,b in zip(h[-17:],u[-17:])) for u in uniq): uniq.append(h)
            hists=uniq
            if ins.mn.startswith('s_cbranch') or ins.mn=='s_branch':
                tgt=ins.ops[0]
                pending.setdefault(tgt,[]).extend([list(h) for h in hists])
        self.nops=nn
        return out


class Q:
    def __init__(self, p, name, maxn):
        self.p=p; self.name=name; self.maxn=maxn; self.ops=[]
    def issue(self, tag=None):
        self.ops.append(tag)
    def count_after(self, tag):
        idx=max(i for i,t in enumerate(self.ops) if t==tag)
        return len(self.ops)-1-idx
    def wait(self, tag):
        if tag not in self.ops: return
        n=self.count_after(tag)
        idx=len(self.ops)-1-n
        if n<=self.maxn:
            self.p(f's_waitcnt {self.name}({n})')
        else:
            self.p(f's_waitcnt {self.name}({self.maxn})'); idx=len(self.ops)-1-self.maxn
        self.ops=self.ops[idx+1:]
    def drain(self):
        self.p(f's_waitcnt {self.name}(0)'); self.ops=[]
    def clear(self): self.ops=[]
```

```python
import sys, os
sys.path.insert(0, os.path.dirname(os.path.abspath(__file__)))
from asmlib import Prog, Q

KNAME = 'interleave_layers__linear_attn_block__dense_activation_silu__prompt_kernel'

OPT = dict(TS=0, STOP=None, FORCE=None, SPIN=1 << 20, NB=6)
for a in sys.argv[2:]:
    k, v = a.split('=')
    OPT[k] = v if not v.lstrip('-').isdigit() else int(v)

XF = 0x000000
PQ = 0x200000
HB = 0x400000
HSTR = 86 * 1024
ST = 0x960000
FB = 0x9A0000
PB = 0x9E0000
PLS = 262144 + 16384
FW = 0xA68000
FN = FW + 8192
FK = FN + 8192
TSB = 0xA70000
WS_END = 0xB00000
R0 = 0
R1 = 98304
KB_, VB_, QB_ = 0, 32768, 65536
SCRA = 49152
XCH = R1
CS1S = R1 + 16384
TAILB = R1 + 32768

sX, sWQ, sWO, sW1, sW2, sOUT, sWS, sDBG = 4, 8, 12, 16, 20, 24, 28, 32
def srd(b): return f's[{b}:{b+3}]'
sW, sTEAM, sR, sLAYER, sFAST, sXCC = 's36', 's37', 's38', 's39', 's40', 's41'
sXFw, sSTw, sPQw, sHw, sPQn, sHn, sXFn, sFn = 's42', 's43', 's44', 's45', 's46', 's47', 's48', 's49'
sFWo, sFWp, sFNo, sFNp, sFKo, sFKp, sSTn = 's50', 's51', 's52', 's53', 's54', 's55', 's56'
sT0, sT1, sT2, sT3, sCNT, sNBLK, sKH, sPL = 's57', 's58', 's59', 's60', 's61', 's62', 's63', 's64'
sFST, sPLD, sW2a, sW2b, sWoO, sMw16, sMw24, sVAL = 's65', 's66', 's67', 's68', 's69', 's70', 's71', 's72'
sOUTo = 's73'
sMLO = 's[74:75]'
sME = 's[76:77]'
sPM = 's[78:79]'
sLOG2E = 's[80:81]'
sEPS6 = 's[82:83]'
sONE2 = 's[84:85]'
sONES, sSELLO, sSELHI, sSENT = 's86', 's87', 's88', 's89'
sTMP2 = 's[90:91]'
sTS = 92
KA = 36

vL16, vQA, vQB, vW1, vN0, vN1 = 'v1', 'v2', 'v3', 'v4', 'v5', 'v6'
vD1 = ['v7', 'v8', 'v9']
vDN, vFLG, vSTA, vPST, vZ, vLANE = 'v10', 'v11', 'v12', 'v13', 'v14', 'v15'
vS, vMU = 'v16', 'v17'
MUF = 20
RSF = 24
T = list(range(28, 44))
BF = 44
ACC = [80, 96, 112]
AF = 128
def v(i): return f'v{i}'
def vr(a, n): return f'v[{a}:{a+n-1}]'
def ar(a, n): return f'a[{a}:{a+n-1}]'
def af(s): return vr(AF + 4 * (s % 32), 4)
aPARK, aTAIL, aCS, aRES, aONES, aCSACC = 0, 96, 120, 144, 152, 160
CSK, CSV, CSQ, CS1 = 0, 1, 2, 3
def csf(i): return ar(aCS + 4 * i, 4)
ONESF = ar(aONES, 4)

p = Prog()
vm = Q(p, 'vmcnt', 63)
lg = Q(p, 'lgkmcnt', 15)
MF = 'v_mfma_f32_32x32x16_bf16'
_lab = [0]
def newlab(s):
    _lab[0] += 1
    return f'L{s}_{_lab[0]}'
_ts = [0]
TSNAMES = []
def ts(name):
    if not OPT['TS']: return
    i = _ts[0]; _ts[0] += 1
    TSNAMES.append(name)
    assert i < 22
    p(f's_memtime s[{sTS}:{sTS+1}]')
    p('s_waitcnt lgkmcnt(0)')
    lg.clear()
    l1 = newlab('ts'); l2 = newlab('ts')
    p(f'v_mov_b32 v18, s{sTS}')
    p(f's_cmp_eq_u32 {sLAYER}, 0')
    p(f's_cbranch_scc0 {l1}')
    p(f'v_accvgpr_write_b32 a{208+i}, v18')
    p(f's_branch {l2}')
    p(f'{l1}:')
    p(f'v_accvgpr_write_b32 a{232+i}, v18')
    p(f'{l2}:')

def barrier():
    p('s_barrier')

def mode_store(fn):
    lf, le = newlab('f'), newlab('e')
    p(f's_cmp_eq_u32 {sFAST}, 1')
    p(f's_cbranch_scc1 {lf}')
    for l in fn(' sc1'): p(l)
    p(f's_branch {le}')
    p(f'{lf}:')
    ls = fn('')
    for l in ls: p(l)
    p(f'{le}:')
    for l in ls:
        if l.startswith('buffer_'): vm.issue('st')

def flag_store(soff, val_sgpr):
    p(f'v_mov_b32 v18, {val_sgpr}')
    p('s_mov_b64 exec, 1')
    mode_store(lambda f: [f'buffer_store_dword v18, off, {srd(sWS)}, {soff}{f}'])
    p('s_mov_b64 exec, -1')

def poll(voff, soff, val_sgpr):
    lp = newlab('poll'); ok = newlab('ok')
    p(f's_mov_b32 {sCNT}, 0')
    p(f'{lp}:')
    p(f'buffer_load_dword v18, {voff}, {srd(sWS)}, {soff} offen sc1')
    p('s_waitcnt vmcnt(0)')
    p(f'v_cmp_gt_u32 vcc, {val_sgpr}, v18')
    p(f's_cbranch_vccz {ok}')
    p(f's_add_u32 {sCNT}, {sCNT}, 1')
    p(f's_cmp_lt_u32 {sCNT}, {OPT["SPIN"]}')
    p(f's_cbranch_scc1 {lp}')
    p('s_branch L_end')
    p(f'{ok}:')
    vm.clear()

def dma(srdb, voff, soff_expr, m0_expr):
    sg, c = m0_expr
    p(f's_add_u32 m0, {sg}, {c}' if sg else f's_mov_b32 m0, {c}')
    sg, c = soff_expr
    p(f's_add_u32 {sT3}, {sg}, {c}' if sg else f's_mov_b32 {sT3}, {c}')
    p(f'buffer_load_dwordx4 {voff}, {srd(srdb)}, {sT3} offen lds')
    vm.issue('dma')

def aload(dst, sbase, idx, tag):
    if idx % 4 == 0:
        p(f's_add_u32 {sT2}, {sbase}, {idx * 1024}')
    off = (idx % 4) * 1024
    p(f'buffer_load_dwordx4 {dst}, {vL16}, {srd(sWS)}, {sT2} offen offset:{off} sc1')
    vm.issue(tag)

def split_bf16(dst_hi_f, dst_lo, x):
    p(f'v_cvt_pk_bf16_f32 {dst_hi_f}, {x}, {x}')
    p(f'v_and_b32 {dst_hi_f}, 0xffff0000, {dst_hi_f}')
    p(f'v_sub_f32 {dst_lo}, {x}, {dst_hi_f}')

def make_cs_frag(i, x):
    h, l = v(T[0]), v(T[1])
    split_bf16(h, l, x)
    p(f'v_cvt_pk_bf16_f32 {v(T[2])}, {h}, {l}')
    p(f'v_cvt_pk_bf16_f32 {v(T[3])}, {h}, 0')
    p(f'v_accvgpr_write_b32 a{aCS+4*i}, {v(T[2])}')
    p(f'v_accvgpr_write_b32 a{aCS+4*i+1}, {v(T[3])}')
    p(f'v_accvgpr_write_b32 a{aCS+4*i+2}, 0')
    p(f'v_accvgpr_write_b32 a{aCS+4*i+3}, 0')

def finish_stats(S, Qq):
    p(f'v_permlane32_swap_b32 {S}, {Qq}')
    p(f'v_add_f32 {S}, {S}, {Qq}')
    p(f'v_mov_b32 {Qq}, {S}')
    p(f'v_permlane32_swap_b32 {S}, {Qq}')
    p(f'v_mul_f32 {vMU}, 0xbb000000, {S}')
    p(f'v_mul_f32 {Qq}, 0x3b000000, {Qq}')
    p(f'v_fma_f32 {Qq}, -{vMU}, {vMU}, {Qq}')
    p(f'v_max_f32 {Qq}, 0, {Qq}')
    p(f'v_add_f32 {Qq}, 0x3727c5ac, {Qq}')
    p(f'v_rsq_f32 {vS}, {Qq}')
    h, l = v(T[0]), v(T[1])
    split_bf16(h, l, vMU)
    p(f'v_cvt_pk_bf16_f32 {v(MUF)}, {h}, {h}')
    p(f'v_cvt_pk_bf16_f32 {v(MUF+1)}, {l}, 0')
    p(f'v_cndmask_b32 {v(MUF)}, 0, {v(MUF)}, {sMLO}')
    p(f'v_cndmask_b32 {v(MUF+1)}, 0, {v(MUF+1)}, {sMLO}')
    split_bf16(h, l, vS)
    p(f'v_cvt_pk_bf16_f32 {v(RSF)}, {h}, {l}')
    p(f'v_cndmask_b32 {v(RSF)}, 0, {v(RSF)}, {sMLO}')

def load_stats(dst):
    for i in range(4):
        p(f'buffer_load_dwordx4 {vr(dst+4*i,4)}, {vL16}, {srd(sWS)}, {sSTw} offen offset:{i*1024} sc1')
        vm.issue('stat')

def sum_stats(src):
    for i in range(1, 8):
        p(f'v_pk_add_f32 {vr(src,2)}, {vr(src,2)}, {vr(src+2*i,2)}')
    finish_stats(v(src), v(src + 1))

def gemm_loop(nsteps, nblk, rd, mm, await_a, extra=None, depth=3, agpr_from=None):
    nl = nsteps if agpr_from is None else agpr_from
    def buf(s, b): return BF + 4 * (nblk * (s % depth) + b)
    def issue(s, b):
        if s < nl:
            rd(s, b, buf(s, b)); lg.issue((s, b)); lg.issue((s, b))
    for s in range(depth - 1):
        for b in range(nblk): issue(s, b)
    for s in range(nsteps):
        for b in range(nblk):
            if b == 0: await_a(s)
            if s < nl:
                lg.wait((s, b)); mm(s, b, vr(buf(s, b), 4))
            else:
                mm(s, b, None)
            issue(s + depth - 1, b)
            if extra: extra(s, b)

def tr(dst, addr, off):
    assert 0 <= off < 65536, off
    p(f'ds_read_b64_tr_b16 {dst}, {addr} offset:{off}')

p('s_cmp_ge_u32 s2, 256')
p('s_cbranch_scc1 L_end')
p(f's_load_dwordx16 s[{KA}:{KA+15}], s[0:1], 0')
p(f's_load_dwordx2 s[{KA+16}:{KA+17}], s[0:1], 64')
p(f's_getpc_b64 {sTMP2}')
p('L_pc:')
p('s_lshr_b32 s3, s2, 3')
p('s_lshl_b32 s3, s3, 11')
p('v_lshlrev_b32 v18, 3, v0')
p('v_add_u32 v18, s3, v18')
p('v_min_u32 v18, (L_codeend - L_pc - 8), v18')
p(f'global_load_dwordx2 v[42:43], v18, {sTMP2}')
vm.issue('pf')
p(f'v_and_b32 {vLANE}, 63, v0')
p('v_lshrrev_b32 v19, 6, v0')
p(f'v_lshlrev_b32 {vL16}, 4, {vLANE}')
p('v_readfirstlane_b32 s94, v19')
tI16, tG, tHI, tT, tA, tB = [v(x) for x in T[10:16]]
tI16, tG, tHI, tT, tA, tB = 'v28', 'v29', 'v30', 'v31', 'v32', 'v33'
p(f'v_and_b32 {tI16}, 15, {vLANE}')
p(f'v_lshrrev_b32 {tG}, 4, {vLANE}')
p(f'v_lshrrev_b32 {tHI}, 5, {vLANE}')
p(f'v_and_b32 {tT}, 31, {vLANE}')
p('s_and_b32 s95, s2, 7')
p('s_lshr_b32 s96, s2, 3')
p('s_and_b32 s97, s96, 15')
p('s_lshr_b32 s98, s96, 4')
XV0, XV1, vDQ = 'v34', 'v35', 'v36'
p(f'v_lshrrev_b32 {tA}, 3, {vLANE}')
p(f'v_and_b32 {tB}, 7, {vLANE}')
p(f'v_xor_b32 {XV0}, {tB}, {tG}')
p(f'v_xor_b32 {XV1}, 4, {XV0}')
p(f'v_lshlrev_b32 {XV0}, 4, {XV0}')
p(f'v_lshlrev_b32 {XV1}, 4, {XV1}')
p(f'v_lshl_add_u32 {XV0}, {tA}, 10, {XV0}')
p(f'v_lshl_add_u32 {XV1}, {tA}, 10, {XV1}')
p(f'v_add_u32 {XV1}, 8192, {XV1}')
p(f'v_lshrrev_b32 {tA}, 2, {vLANE}')
p(f'v_mul_u32_u24 {tA}, 3072, {tA}')
p(f'v_and_b32 {tB}, 3, {vLANE}')
p(f'v_lshl_add_u32 {vDQ}, {tB}, 4, {tA}')
p('s_lshl_b32 s99, s95, 3')
p('s_lshl_b32 s100, s98, 2')
p('s_add_u32 s99, s99, s100')
p('s_add_u32 s99, s99, s94')
p('s_mul_i32 s100, s94, 49152')
p('s_lshl_b32 s101, s97, 6')
p('s_add_u32 s100, s100, s101')
p(f'v_add_u32 {vDQ}, s100, {vDQ}')
p('s_waitcnt lgkmcnt(0)')
for (b, k, size) in [(sX, 0, 2097152), (sWQ, 1, 1572864), (sWO, 2, 524288), (sW1, 4, 1409024), (sW2, 5, 1409024),
                     (sOUT, 6, 2097152), (sDBG, 7, 256), (sWS, 8, WS_END)]:
    p(f's_mov_b32 s{b}, s{KA+2*k}')
    p(f's_and_b32 s{b+1}, s{KA+2*k+1}, 0xffff')
    p(f's_mov_b32 s{b+2}, {size}')
    p(f's_mov_b32 s{b+3}, 0x20000')
p(f's_mov_b32 {sW}, s94')
p(f's_mov_b32 {sTEAM}, s95')
p(f's_mov_b32 {sR}, s96')
p(f's_mov_b32 {sLAYER}, 0')
sJ, sM, sTB = 's97', 's98', 's99'
ts('start')
def pst_offsets(dst, par_sgpr_or_const, t0, t1):
    p(f's_lshl_b32 {sT0}, {sJ}, 1')
    p(f's_add_u32 {sT0}, {sT0}, {par_sgpr_or_const}')
    p(f's_lshl_b32 {sT1}, {sTEAM}, 1')
    p(f's_add_u32 {sT1}, {sT1}, {sM}')
    p(f's_lshl_b32 {sT2}, {sT0}, 13')
    p(f's_lshl_b32 {sT3}, {sT1}, 8')
    p(f's_add_u32 {sT2}, {sT2}, {sT3}')
    p(f'v_lshlrev_b32 {t0}, 12, {tHI}')
    p(f'v_lshl_add_u32 {t0}, {tI16}, 4, {t0}')
    p(f'v_add_u32 {t0}, {sT2}, {t0}')
    p(f's_lshl_b32 {sT2}, {sT0}, 9')
    p(f's_lshl_b32 {sT3}, {sT1}, 4')
    p(f's_add_u32 {sT2}, {sT2}, {sT3}')
    p(f's_add_u32 {sT2}, {sT2}, 262144')
    p(f'v_lshlrev_b32 {t1}, 8, {tHI}')
    p(f'v_add_u32 {t1}, {sT2}, {t1}')
    p(f'v_and_b32 {dst}, 1, {tG}')
    p(f'v_cmp_eq_u32 vcc, {par_sgpr_or_const}, {dst}')
    p(f'v_cndmask_b32 {dst}, {t1}, {t0}, vcc')

lskip = newlab('noclr')
p(f's_cmp_eq_u32 {sW}, 3')
p(f's_cbranch_scc0 {lskip}')
for i in range(4): p(f'v_mov_b32 {v(BF+i)}, -1')
for par, mask in ((0, ('0x0001ffff', '0x0001ffff')), (1, ('0xffff0001', '0xffff0001'))):
    pst_offsets('v37', par, 'v38', 'v39')
    p(f's_mov_b32 exec_lo, {mask[0]}')
    p(f's_mov_b32 exec_hi, {mask[1]}')
    p(f's_mov_b32 {sT0}, {PB}')
    p(f'buffer_store_dwordx4 {vr(BF,4)}, v37, {srd(sWS)}, {sT0} offen sc1')
    p(f's_mov_b32 {sT0}, {PB+PLS}')
    p(f'buffer_store_dwordx4 {vr(BF,4)}, v37, {srd(sWS)}, {sT0} offen sc1')
    p('s_mov_b64 exec, -1')
p(f'v_and_b32 v37, 3, {vLANE}')
p(f's_lshl_b32 {sT0}, {sTEAM}, 10')
p(f's_lshl_b32 {sT1}, {sM}, 9')
p(f's_add_u32 {sT1}, {sT1}, {sT0}')
p(f's_lshl_b32 {sT2}, {sJ}, 2')
p(f's_add_u32 {sT1}, {sT1}, {sT2}')
p(f's_add_u32 {sT1}, {sT1}, {FW}')
p(f'v_lshlrev_b32 v38, 7, v37')
p(f'v_add_u32 v38, {sT1}, v38')
p(f's_lshr_b32 {sT1}, {sR}, 3')
p(f's_lshl_b32 {sT1}, {sT1}, 8')
p(f's_and_b32 {sT2}, {sR}, 7')
p(f's_lshl_b32 {sT2}, {sT2}, 3')
p(f's_add_u32 {sT1}, {sT1}, {sT2}')
p(f's_add_u32 {sT1}, {sT1}, {sT0}')
p(f's_add_u32 {sT1}, {sT1}, {FN}')
p(f'v_and_b32 v39, 1, v37')
p(f'v_lshlrev_b32 v39, 7, v39')
p(f'v_lshrrev_b32 v40, 1, v37')
p(f'v_lshl_add_u32 v39, v40, 2, v39')
p(f'v_add_u32 v39, {sT1}, v39')
p(f's_lshl_b32 {sT1}, {sTEAM}, 9')
p(f's_lshl_b32 {sT2}, {sR}, 4')
p(f's_add_u32 {sT1}, {sT1}, {sT2}')
p(f's_add_u32 {sT1}, {sT1}, {FK}')
p(f'v_lshlrev_b32 v40, 2, v37')
p(f'v_add_u32 v40, {sT1}, v40')
p(f'v_cmp_gt_u32 vcc, 4, {vLANE}')
p(f'v_cndmask_b32 v39, v39, v38, vcc')
p(f'v_cmp_gt_u32 vcc, 8, {vLANE}')
p(f'v_cndmask_b32 v40, v40, v39, vcc')
p(f'v_mov_b32 v41, 0')
p('s_mov_b64 exec, 0xfff')
p(f'buffer_store_dword v41, v40, {srd(sWS)}, 0 offen sc1')
p('s_mov_b64 exec, -1')
p(f'{lskip}:')

sXB, sXM, sQM = 's100', 's101', 's3'
p(f's_lshl_b32 {sXB}, {sTB}, 15')
p(f's_lshl_b32 {sXM}, {sW}, 14')
p(f's_add_u32 {sXM}, {sXM}, {R1}')
p(f's_lshl_b32 {sQM}, {sW}, 10')
def xw_chunk(c):
    for i in range(4):
        dma(sX, XV1 if i & 1 else XV0, (sXB, (i >> 1) * 16384 + c * 128), (sXM, (c & 3) * 4096 + i * 1024))
    for blk, col in ((KB_, 1024), (VB_, 2048), (QB_, 0)):
        dma(sWQ, vDQ, (None, c * 64 * 3072 + col), (sQM, blk + c * 4096))
    vm.ops[-1] = ('chunk', c)
for c in range(4): xw_chunk(c)
p(f's_getreg_b32 {sXCC}, hwreg(HW_REG_XCC_ID, 0, 4)')
p(f's_and_b32 {sXCC}, {sXCC}, 7')
lskip = newlab('noreg')
p(f's_cmp_eq_u32 {sW}, 3')
p(f's_cbranch_scc0 {lskip}')
p(f's_lshl_b32 {sT0}, {sXCC}, 3')
p(f's_lshl_b64 {sTMP2}, 1, {sT0}')
p('v_mov_b32 v40, s90')
p('v_mov_b32 v41, s91')
p(f's_and_b32 {sT0}, {sTEAM}, 1')
p(f's_lshl_b32 {sT0}, {sT0}, 7')
p(f's_lshr_b32 {sT1}, {sTEAM}, 1')
p(f's_lshl_b32 {sT1}, {sT1}, 3')
p(f's_add_u32 {sT0}, {sT0}, {sT1}')
p('s_waitcnt vmcnt(28)')
p('s_mov_b64 exec, 1')
p(f'buffer_atomic_add_x2 v[40:41], off, {srd(sDBG)}, {sT0} sc1')
p('s_mov_b64 exec, -1')
p(f'{lskip}:')

sC, sM2, sTB2 = sT0, sT1, 's94'
p(f's_lshr_b32 {sKH}, {sW}, 1')
p(f's_add_u32 {sXFw}, {sXB}, {XF}')
p(f's_lshl_b32 {sSTw}, {sTB}, 12')
p(f's_add_u32 {sSTw}, {sSTw}, {ST}')
p(f's_lshl_b32 {sT2}, {sJ}, 11')
p(f's_add_u32 {sPQw}, {sXB}, {sT2}')
p(f's_add_u32 {sPQw}, {sPQw}, {PQ}')
p(f's_mul_i32 {sT2}, {sJ}, 3')
p(f's_lshl_b32 {sT3}, {sJ}, 1')
p(f's_add_u32 {sT3}, {sT3}, 11')
p(f's_cmp_lt_u32 {sJ}, 11')
p(f's_cselect_b32 s95, {sT2}, {sT3}')
p(f's_cselect_b32 {sNBLK}, 3, 2')
p(f's_mul_i32 {sHw}, {sTB}, {HSTR}')
p(f's_lshl_b32 {sT2}, s95, 11')
p(f's_add_u32 {sHw}, {sHw}, {sT2}')
p(f's_add_u32 {sHw}, {sHw}, {HB}')
p(f's_lshl_b32 {sT2}, {sTB}, 7')
p(f's_add_u32 {sFNp}, {sT2}, {FN}')
p(f's_lshl_b32 {sT3}, {sJ}, 2')
p(f's_add_u32 {sFWo}, {sT2}, {sT3}')
p(f's_add_u32 {sFWo}, {sFWo}, {FW}')
p(f's_lshl_b32 s95, s95, 6')
for q in range(3):
    p(f'v_add_u32 {tA}, {64*q}, {vLANE}')
    p(f'v_mul_u32_u24 {tB}, 43691, {tA}')
    p(f'v_lshrrev_b32 {tB}, 19, {tB}')
    p(f'v_mul_u32_u24 {vD1[q]}, 12, {tB}')
    p(f'v_sub_u32 {tA}, {tA}, {vD1[q]}')
    p(f'v_mul_u32_u24 {tB}, 2752, {tB}')
    p(f'v_lshl_add_u32 {vD1[q]}, {tA}, 4, {tB}')
    p(f'v_add_u32 {vD1[q]}, s95, {vD1[q]}')
p(f's_and_b32 {sC}, {sR}, 7')
p(f's_lshr_b32 {sM2}, {sR}, 3')
p(f's_lshl_b32 {sTB2}, {sTEAM}, 3')
p(f's_lshl_b32 {sT2}, {sM2}, 1')
p(f's_add_u32 {sTB2}, {sTB2}, {sT2}')
p(f's_and_b32 {sT2}, {sW}, 1')
p(f's_add_u32 {sTB2}, {sTB2}, {sT2}')
p(f's_lshl_b32 {sT2}, {sTB2}, 15')
p(f's_lshl_b32 {sT3}, {sKH}, 14')
p(f's_add_u32 {sPQn}, {sT2}, {sT3}')
p(f's_add_u32 {sPQn}, {sPQn}, {PQ}')
p(f's_lshl_b32 s95, {sC}, 1')
p(f's_add_u32 s95, s95, {sKH}')
p(f's_lshl_b32 {sT3}, s95, 11')
p(f's_add_u32 {sXFn}, {sT2}, {sT3}')
p(f's_add_u32 {sXFn}, {sXFn}, {XF}')
p(f's_lshl_b32 {sT3}, s95, 6')
p(f's_add_u32 {sOUTo}, {sT2}, {sT3}')
p(f's_mul_i32 {sHn}, {sTB2}, {HSTR}')
p(f's_mul_i32 {sT3}, {sKH}, {43*1024}')
p(f's_add_u32 {sHn}, {sHn}, {sT3}')
p(f's_add_u32 {sHn}, {sHn}, {HB}')
p(f's_lshl_b32 {sSTn}, {sTB2}, 12')
p(f's_add_u32 {sSTn}, {sSTn}, {ST}')
p(f's_lshl_b32 {sT2}, {sTB2}, 7')
p(f's_add_u32 {sFWp}, {sT2}, {FW}')
p(f's_lshl_b32 {sT3}, s95, 2')
p(f's_add_u32 {sFNo}, {sT2}, {sT3}')
p(f's_add_u32 {sFNo}, {sFNo}, {FN}')
p(f's_lshl_b32 {sT2}, {sTEAM}, 15')
p(f's_lshl_b32 {sT3}, {sKH}, 14')
p(f's_add_u32 {sFn}, {sT2}, {sT3}')
p(f's_add_u32 {sFn}, {sFn}, {FB}')
p(f's_lshl_b32 {sT3}, {sR}, 10')
p(f's_add_u32 {sFST}, {sT2}, {sT3}')
p(f's_lshl_b32 {sT3}, {sW}, 8')
p(f's_add_u32 {sFST}, {sFST}, {sT3}')
p(f's_add_u32 {sFST}, {sFST}, {FB}')
p(f's_lshl_b32 {sT2}, {sTEAM}, 9')
p(f's_lshl_b32 {sT3}, {sKH}, 8')
p(f's_add_u32 {sFKp}, {sT2}, {sT3}')
p(f's_add_u32 {sFKp}, {sFKp}, {FK}')
p(f's_lshl_b32 {sT3}, {sR}, 4')
p(f's_add_u32 {sFKo}, {sT2}, {sT3}')
p(f's_lshl_b32 {sT3}, {sW}, 2')
p(f's_add_u32 {sFKo}, {sFKo}, {sT3}')
p(f's_add_u32 {sFKo}, {sFKo}, {FK}')
p(f's_and_b32 {sT2}, s95, 1')
p(f's_lshl_b32 {sT2}, {sT2}, 3')
p(f's_lshr_b32 {sT3}, s95, 3')
p(f's_lshl_b32 {sT3}, {sT3}, 9')
p(f's_add_u32 {sT2}, {sT2}, {sT3}')
p(f's_and_b32 {sT3}, s95, 6')
p(f's_lshl_b32 {sT3}, {sT3}, 9')
p(f's_add_u32 {sT2}, {sT2}, {sT3}')
p(f'v_lshlrev_b32 {vSTA}, 4, {tT}')
p(f'v_lshl_add_u32 {vSTA}, {tHI}, 2, {vSTA}')
p(f'v_add_u32 {vSTA}, {sT2}, {vSTA}')
p(f'v_and_b32 {tA}, 1, {tG}')
p(f'v_lshlrev_b32 {tA}, 2, {tA}')
p(f'v_and_b32 {tB}, 7, {vLANE}')
p(f'v_xor_b32 {tA}, {tA}, {tB}')
p(f'v_lshlrev_b32 {tA}, 4, {tA}')
p(f'v_lshrrev_b32 {tB}, 3, {vLANE}')
p(f'v_lshl_add_u32 {vDN}, {tB}, 10, {tA}')
p(f's_lshl_b32 {sT2}, {sC}, 7')
p(f'v_add_u32 {vDN}, {sT2}, {vDN}')
p(f's_lshl_b32 {sWoO}, {sW}, 17')
p(f's_mul_i32 {sT2}, {sKH}, {688*1024}')
p(f's_and_b32 {sT3}, {sW}, 1')
p(f's_lshl_b32 {sW2a}, {sT3}, 17')
p(f's_add_u32 {sW2a}, {sW2a}, {sT2}')
p(f's_mul_i32 {sW2b}, {sT3}, {192*1024}')
p(f's_add_u32 {sW2b}, {sW2b}, {sT2}')
p(f's_add_u32 {sW2b}, {sW2b}, {256*1024}')
p(f's_lshl_b32 {sMw16}, {sW}, 14')
p(f's_add_u32 {sMw16}, {sMw16}, {R1}')
p(f's_mul_i32 {sMw24}, {sW}, 24576')
p(f's_and_b32 s95, {sW}, 1')
pst_offsets(vPST, 's95', 'v38', 'v39')
p(f's_cmp_eq_u32 s95, 0')
p('s_mov_b32 s79, 0xffff0001')
p('s_cselect_b32 s78, 0x0001ffff, s79')
p(f's_mov_b32 s79, s78')
p(f'v_lshlrev_b32 {vZ}, 4, {tI16}')
p(f'v_lshl_add_u32 {vZ}, {tG}, 2, {vZ}')
p(f'v_lshlrev_b32 {vFLG}, 2, {tI16}')
p(f's_xor_b32 {sPL}, {sW}, {sR}')
p(f's_and_b32 {sPL}, {sPL}, 1')
p(f's_lshl_b32 {sT2}, {sR}, 13')
p(f's_lshl_b32 {sT3}, {sKH}, 12')
p(f's_add_u32 {sT2}, {sT2}, {sT3}')
p(f's_lshl_b32 {sT0}, {sR}, 9')
p(f's_lshl_b32 {sT3}, {sKH}, 8')
p(f's_add_u32 {sT0}, {sT0}, {sT3}')
p(f's_add_u32 {sT0}, {sT0}, 262144')
p(f's_cmp_eq_u32 {sPL}, 1')
p(f's_cselect_b32 {sPLD}, {sT0}, {sT2}')
p(f's_add_u32 {sPLD}, {sPLD}, {PB}')
p(f'v_lshrrev_b32 {tA}, 2, {tI16}')
p(f'v_and_b32 {tB}, 1, {tG}')
p(f'v_lshlrev_b32 {tB}, 5, {tB}')
p(f'v_and_b32 v37, 3, {tI16}')
p(f'v_lshl_add_u32 {tB}, v37, 3, {tB}')
p(f'v_lshl_add_u32 v37, {tHI}, 3, {tA}')
p(f'v_lshl_add_u32 {vQA}, v37, 6, {tB}')
p(f'v_add_u32 {vQB}, 256, {vQA}')
p(f'v_lshl_add_u32 v37, {tHI}, 2, {tA}')
p(f'v_mul_u32_u24 {vW1}, 192, v37')
p(f'v_add_u32 {vW1}, {vW1}, {tB}')
p(f'v_lshl_add_u32 {vN0}, v37, 7, {tB}')
p(f'v_lshrrev_b32 v38, 3, {tI16}')
p(f'v_xor_b32 v38, {sKH}, v38')
p(f'v_lshlrev_b32 v39, 6, v38')
p(f'v_xor_b32 v38, 64, v39')
p(f's_lshl_b32 {sT2}, {sKH}, 15')
p(f's_add_u32 {sT2}, {sT2}, {R1}')
p(f'v_add_u32 {vN0}, {sT2}, {vN0}')
p(f'v_add_u32 {vN1}, {vN0}, v38')
p(f'v_add_u32 {vN0}, {vN0}, v39')
XR = ['v37', 'v38', 'v39', 'v40']
p(f'v_lshrrev_b32 {tA}, 1, {tT}')
p(f'v_and_b32 {tA}, 7, {tA}')
p(f'v_xor_b32 {tA}, {tA}, {tHI}')
p(f'v_lshlrev_b32 {tB}, 7, {tT}')
p(f'v_add_u32 {tB}, {sXM}, {tB}')
for ss in range(4):
    p(f'v_xor_b32 {XR[ss]}, {2*ss}, {tA}')
    p(f'v_lshl_add_u32 {XR[ss]}, {XR[ss]}, 4, {tB}')
vROW = 'v41'
p(f'v_lshlrev_b32 {vROW}, 10, {tT}')
p(f'v_lshl_add_u32 {vROW}, {tHI}, 4, {vROW}')
p('s_mov_b32 s74, -1'); p('s_mov_b32 s75, 0')
p('s_mov_b32 s76, 0xffff'); p('s_mov_b32 s77, 0xffff')
p('s_mov_b32 s80, 0x3fb8aa3b'); p('s_mov_b32 s81, 0x3fb8aa3b')
p('s_mov_b32 s82, 0x358637bd'); p('s_mov_b32 s83, 0x358637bd')
p('s_mov_b32 s84, 1.0'); p('s_mov_b32 s85, 1.0')
p(f's_mov_b32 {sONES}, 0x3f803f80'); p(f's_mov_b32 {sSELLO}, 0x3f80'); p(f's_mov_b32 {sSELHI}, 0x3f800000')
p(f's_mov_b32 {sSENT}, 0xfffffffe')
p(f'v_mov_b32 v18, {sONES}')
for i in range(4): p(f'v_accvgpr_write_b32 a{aONES+i}, v18')
for i in (2, 3): p(f'v_mov_b32 {v(MUF+i)}, 0')
for i in (1, 2, 3): p(f'v_mov_b32 {v(RSF+i)}, 0')
SS, SQ = 'v28', 'v29'
p(f'v_mov_b32 {SS}, 0'); p(f'v_mov_b32 {SQ}, 0')
ts('pro_done')

for c in range(8):
    vm.wait(('chunk', c))
    barrier()
    for ss in range(4):
        p(f'ds_read_b128 {af(4*c+ss)}, {XR[ss]} offset:{(c&3)*4096}')
        lg.issue(('x', ss))
    def rd(ss, bi, dst):
        s = 4 * c + ss
        if bi < 2:
            tr(vr(dst, 2), vQA, (KB_, VB_)[bi] + s * 1024); tr(vr(dst + 2, 2), vQB, (KB_, VB_)[bi] + s * 1024)
        else:
            tr(vr(dst, 2), 'v30', s * 1024); tr(vr(dst + 2, 2), 'v31', s * 1024)
    if c == 0:
        p(f'v_add_u32 v30, {QB_}, {vQA}'); p(f'v_add_u32 v31, {QB_}, {vQB}')
    def mm(ss, bi, fr):
        s = 4 * c + ss
        if bi < 2:
            p(f'{MF} {vr(ACC[bi],16)}, {af(s)}, {fr}, {"0" if s == 0 else vr(ACC[bi],16)}')
        p(f'{MF} {ar(aCSACC+16*bi,16)}, {ONESF}, {fr}, {"0" if s == 0 else ar(aCSACC+16*bi,16)}')
    def aw(ss):
        if ss == 0:
            lg.wait(('x', 3))
            if c < 4: xw_chunk(c + 4)
    def ex(ss, bi):
        if bi == 2: return
        a = AF + 4 * (4 * c + ss) + 2 * bi
        for d in range(2):
            p(f'v_dot2_f32_bf16 {SS}, {v(a+d)}, {sONES}, {SS}')
            p(f'v_dot2_f32_bf16 {SQ}, {v(a+d)}, {v(a+d)}, {SQ}')
    gemm_loop(4, 3, rd, mm, aw, ex, depth=2)
p(f'buffer_load_dwordx4 {vr(BF,4)}, {vROW}, {srd(sX)}, {sOUTo} offen'); vm.issue('res')
p(f'buffer_load_dwordx4 {vr(BF+4,4)}, {vROW}, {srd(sX)}, {sOUTo} offen offset:32'); vm.issue('res')
finish_stats(SS, SQ)
for bi in range(3):
    p(f'v_accvgpr_read_b32 v32, a{aCSACC+16*bi}')
    make_cs_frag(bi, 'v32')
p(f's_lshl_b32 {sT0}, {sW}, 14')
p(f'v_add_u32 v30, {sT0}, {vL16}')
for i in range(16):
    p(f'ds_read_b128 {ar(aPARK+4*i,4)}, v30 offset:{i*1024}')
vm.wait('res')
p(f'v_permlane32_swap_b32 {v(BF)}, {v(BF+2)}'); p(f'v_permlane32_swap_b32 {v(BF+1)}, {v(BF+3)}')
p(f'v_permlane32_swap_b32 {v(BF+4)}, {v(BF+6)}'); p(f'v_permlane32_swap_b32 {v(BF+5)}, {v(BF+7)}')
for i in range(8): p(f'v_accvgpr_write_b32 a{aRES+i}, {v(BF+i)}')
lp = newlab('reg'); ok = newlab('regok')
p(f'v_and_b32 v32, 7, {vLANE}')
p('v_and_b32 v33, 1, v32')
p('v_lshlrev_b32 v33, 7, v33')
p('v_lshrrev_b32 v34, 1, v32')
p('v_lshl_add_u32 v33, v34, 3, v33')
p(f's_mov_b32 {sCNT}, 0')
p(f's_mov_b32 {sT0}, 0x01010101')
p(f'{lp}:')
p(f'buffer_load_dwordx2 v[34:35], v33, {srd(sDBG)}, 0 offen sc1')
p('s_waitcnt vmcnt(0)')
p(f'v_dot4_u32_u8 v36, v34, {sT0}, 0')
p(f'v_dot4_u32_u8 v36, v35, {sT0}, v36')
p('v_cmp_ne_u32 vcc, 32, v36')
p(f's_cbranch_vccz {ok}')
p(f's_add_u32 {sCNT}, {sCNT}, 1')
p(f's_cmp_lt_u32 {sCNT}, {OPT["SPIN"]}')
p(f's_cbranch_scc1 {lp}')
p('s_branch L_end')
p(f'{ok}:')
vm.clear()
p(f'v_readlane_b32 s90, v34, {sTEAM}')
p(f'v_readlane_b32 s91, v35, {sTEAM}')
p(f's_lshl_b32 {sT0}, {sXCC}, 3')
p(f's_lshr_b64 {sTMP2}, {sTMP2}, {sT0}')
p('s_and_b32 s90, s90, 0xff')
p('s_cmp_eq_u32 s90, 32')
p(f's_cselect_b32 {sFAST}, 1, 0')
if OPT['FORCE'] is not None: p(f's_mov_b32 {sFAST}, {OPT["FORCE"]}')
lg.drain()
barrier()
for i in range(16): dma(sWO, vDN, (sWoO, i * 8192), (sMw16, i * 1024))
p('s_branch L_kvepi')

p('L_kv1:')
vm.clear(); lg.clear()
p(f's_mov_b32 {sVAL}, 2')
poll(vFLG, sFNp, sVAL)
ts('kv_polled')
NB = OPT['NB']
for s in range(NB): aload(af(s), sXFw, s, ('a', s))
def rd(s, b, dst):
    tr(vr(dst, 2), vQA, (KB_, VB_)[b] + s * 1024); tr(vr(dst + 2, 2), vQB, (KB_, VB_)[b] + s * 1024)
def mm(s, b, fr):
    p(f'{MF} {vr(ACC[b],16)}, {af(s)}, {fr}, {"0" if s == 0 else vr(ACC[b],16)}')
def ex(s, b):
    if b == 0:
        if s + NB < 32: aload(af(s + NB), sXFw, s + NB, ('a', s + NB))
        elif s + NB == 32: load_stats(ACC[2])
gemm_loop(32, 2, rd, mm, lambda s: vm.wait(('a', s)), ex)
vm.wait('stat')
sum_stats(ACC[2])
barrier()
for i in range(16): dma(sWO, vDN, (sWoO, i * 8192), (sMw16, i * 1024))

p('L_kvepi:')
ts('kv_done')
vm.ops = ['dma'] * 16; lg.clear()
p(f'{MF} {vr(ACC[0],16)}, {vr(MUF,4)}, {csf(CSK)}, {vr(ACC[0],16)}')
p(f'{MF} {vr(ACC[2],16)}, {vr(RSF,4)}, {ONESF}, 0')
p(f'{MF} {vr(ACC[1],16)}, {vr(MUF,4)}, {csf(CSV)}, {vr(ACC[1],16)}')
p(f's_mul_i32 {sT0}, {sW}, {16*2752}')
p(f's_mul_i32 {sT1}, {sW}, 3072')
def w1_batch(g0):
    for gi in range(4):
        for q in range(3):
            G = g0 + 4 * gi
            dma(sW1, vD1[q], (sT0, G * 16 * 2752), (sT1, G * 3072 + q * 1024))
w1_batch(0)
PK, PV = BF, BF + 8
for m in range(8):
    r0 = ACC[0] + 2 * m; s0 = ACC[2] + 2 * m
    u = T[2 * (m % 4)]
    p(f'v_pk_fma_f32 {vr(r0,2)}, {vr(r0,2)}, {vr(s0,2)}, {sEPS6}')
    p(f'v_pk_mul_f32 {vr(u,2)}, {vr(r0,2)}, {sLOG2E}')
    p(f'v_max_f32 {v(r0)}, s82, {v(r0)}')
    p(f'v_max_f32 {v(r0+1)}, s82, {v(r0+1)}')
    p(f'v_exp_f32_e64 {v(u)}, {v(u)} clamp')
    p(f'v_exp_f32_e64 {v(u+1)}, {v(u+1)} clamp')
    r1 = ACC[1] + 2 * m
    p(f'v_pk_mul_f32 {vr(r1,2)}, {vr(r1,2)}, {vr(s0,2)}')
    p(f'v_pk_add_f32 {vr(r0,2)}, {vr(r0,2)}, {vr(u,2)}')
    p(f'v_cvt_pk_bf16_f32 {v(PV+m)}, {v(r1)}, {v(r1+1)}')
    p(f'v_cvt_pk_bf16_f32 {v(PK+m)}, {v(r0)}, {v(r0+1)}')
p(f'{MF} {vr(ACC[0],16)}, {vr(PK,4)}, {vr(PV,4)}, 0')
p(f'{MF} {vr(ACC[1],16)}, {vr(PK,4)}, {ONESF}, 0')
p(f'{MF} {vr(ACC[0],16)}, {vr(PK+4,4)}, {vr(PV+4,4)}, {vr(ACC[0],16)}')
p(f'{MF} {vr(ACC[1],16)}, {vr(PK+4,4)}, {ONESF}, {vr(ACC[1],16)}')
p(f's_lshl_b32 {sT2}, {sW}, 12')
p(f'v_add_u32 v28, {sT2}, {vL16}')
p(f's_lshl_b32 {sT2}, {sW}, 11')
p(f'v_add_u32 v29, {sT2}, {vL16}')
p(f'v_add_u32 v30, {QB_}, {vQA}'); p(f'v_add_u32 v31, {QB_}, {vQB}')
for i in range(8):
    p(f'v_cndmask_b32 {v(ACC[0]+i)}, {v(ACC[1]+i)}, {v(ACC[0]+i)}, {sME}')
for i in range(8, 16):
    p(f'v_cndmask_b32 {v(ACC[0]+i)}, {v(ACC[0]+i)}, {v(ACC[1]+i)}, {sME}')
for q in range(4):
    p(f'ds_write_b128 v28, {vr(ACC[0]+4*q,4)} offset:{SCRA+q*1024}')
lg.drain()
barrier()
lskip = newlab('nopub')
p(f's_cmp_lt_u32 {sW}, 2')
p(f's_cbranch_scc0 {lskip}')
for wv in range(4):
    for q in range(2):
        p(f'ds_read_b128 {vr(ACC[0]+8*wv+4*q,4)}, v29 offset:{SCRA+wv*4096+q*1024}')
p('s_waitcnt lgkmcnt(0)')
for k in range(4):
    p(f'v_pk_add_f32 {vr(ACC[0]+2*k,2)}, {vr(ACC[0]+2*k,2)}, {vr(ACC[0]+8+2*k,2)}')
    p(f'v_pk_add_f32 {vr(ACC[0]+16+2*k,2)}, {vr(ACC[0]+16+2*k,2)}, {vr(ACC[0]+24+2*k,2)}')
for k in range(4):
    p(f'v_pk_add_f32 {vr(ACC[0]+2*k,2)}, {vr(ACC[0]+2*k,2)}, {vr(ACC[0]+16+2*k,2)}')
for k in range(4):
    p(f'v_cvt_pk_bf16_f32 {v(ACC[1]+k)}, {v(ACC[0]+2*k)}, {v(ACC[0]+2*k+1)}')
for k in range(4):
    p(f'v_min_u32 {v(ACC[1]+k)}, {sSENT}, {v(ACC[1]+k)}')
p(f's_mul_i32 {sT2}, {sLAYER}, {PLS}')
p(f's_add_u32 {sT2}, {sT2}, {PB}')
p(f's_mov_b64 exec, {sPM}')
p(f'buffer_store_dwordx4 {vr(ACC[1],4)}, {vPST}, {srd(sWS)}, {sT2} offen sc1')
p('s_mov_b64 exec, -1')
p(f'{lskip}:')
ts('p_pub')
def rd(s, b, dst):
    tr(vr(dst, 2), 'v30', s * 1024); tr(vr(dst + 2, 2), 'v31', s * 1024)
def mm(s, b, fr):
    p(f'{MF} {vr(ACC[2],16)}, {fr}, {af(s)}, {"0" if s == 0 else vr(ACC[2],16)}')
gemm_loop(32, 1, rd, mm, lambda s: None, None, depth=5)
p(f'{MF} {vr(ACC[2],16)}, {csf(CSQ)}, {vr(MUF,4)}, {vr(ACC[2],16)}')
lskip = newlab('nopark')
p(f's_cmp_eq_u32 {sLAYER}, 0')
p(f's_cbranch_scc0 {lskip}')
p(f's_lshl_b32 {sT2}, {sW}, 13')
p(f's_add_u32 {sT2}, {sT2}, {QB_}')
p(f'v_add_u32 v28, {sT2}, {vL16}')
for i in range(8):
    p(f'ds_read_b128 {ar(aPARK+64+4*i,4)}, v28 offset:{i*1024}')
p(f'{lskip}:')
PD = AF
def p_loads():
    lz, le = newlab('pz'), newlab('pe')
    p(f's_mul_i32 {sT2}, {sLAYER}, {PLS}')
    p(f's_add_u32 {sT2}, {sT2}, {sPLD}')
    p(f's_cmp_eq_u32 {sPL}, 1')
    p(f's_cbranch_scc1 {lz}')
    for i in range(4):
        p(f'buffer_load_dwordx4 {vr(PD+4*i,4)}, {vL16}, {srd(sWS)}, {sT2} offen offset:{i*1024} sc1')
    p(f's_branch {le}')
    p(f'{lz}:')
    p(f'buffer_load_dword {v(PD)}, {vZ}, {srd(sWS)}, {sT2} offen sc1')
    p(f'{le}:')
p_loads()
p(f'v_mul_f32 v19, s80, {vS}')
for m in range(8):
    r0 = ACC[2] + 2 * m; u = T[2 * (m % 4)]
    p(f'v_mul_f32 {v(u)}, v19, {v(r0)}')
    p(f'v_mul_f32 {v(u+1)}, v19, {v(r0+1)}')
    p(f'v_max_f32 {v(r0)}, 0, {v(r0)}')
    p(f'v_max_f32 {v(r0+1)}, 0, {v(r0+1)}')
    p(f'v_exp_f32_e64 {v(u)}, {v(u)} clamp')
    p(f'v_exp_f32_e64 {v(u+1)}, {v(u+1)} clamp')
    p(f'v_fma_f32 {v(r0)}, {v(r0)}, {vS}, s82')
    p(f'v_fma_f32 {v(r0+1)}, {v(r0+1)}, {vS}, s82')
    p(f'v_pk_add_f32 {vr(r0,2)}, {vr(r0,2)}, {vr(u,2)}')
    p(f'v_cvt_pk_bf16_f32 {v(BF+m)}, {v(r0)}, {v(r0+1)}')
mode_store(lambda f: [f'buffer_store_dwordx4 {vr(BF,4)}, {vL16}, {srd(sWS)}, {sPQw} offen{f}',
                      f'buffer_store_dwordx4 {vr(BF+4,4)}, {vL16}, {srd(sWS)}, {sPQw} offen offset:1024{f}'])
p(f's_lshl_b32 {sVAL}, {sLAYER}, 1')
p(f's_add_u32 {sVAL}, {sVAL}, 1')
vm.drain()
flag_store(sFWo, sVAL)
ts('pq_pub')
lchk, lok, lz, lzz, ldone = newlab('pchk'), newlab('pok'), newlab('pzc'), newlab('pzr'), newlab('pdone')
p(f's_mov_b32 {sCNT}, 0')
p(f'{lchk}:')
p(f'v_mov_b32 v28, {v(PD)}')
p(f's_cmp_eq_u32 {sPL}, 1')
p(f's_cbranch_scc1 {lz}')
p(f'v_max3_u32 v28, v28, {v(PD+1)}, {v(PD+2)}')
for i in range(3, 15, 2):
    p(f'v_max3_u32 v28, v28, {v(PD+i)}, {v(PD+i+1)}')
p(f'v_max_u32 v28, v28, {v(PD+15)}')
p(f'{lz}:')
p('v_cmp_eq_u32 vcc, -1, v28')
p(f's_cbranch_vccz {lok}')
p_loads()
p('s_waitcnt vmcnt(0)')
p(f's_add_u32 {sCNT}, {sCNT}, 1')
p(f's_cmp_lt_u32 {sCNT}, {OPT["SPIN"]}')
p(f's_cbranch_scc1 {lchk}')
p('s_branch L_end')
p(f'{lok}:')
V = T[0]
p(f's_cmp_eq_u32 {sPL}, 1')
p(f's_cbranch_scc1 {lzz}')
for i in range(4):
    for d in range(4):
        p(f'v_dot2_f32_bf16 {v(V+2*d)}, {v(PD+4*i+d)}, {sSELLO}, {"0" if i == 0 else v(V+2*d)}')
        p(f'v_dot2_f32_bf16 {v(V+2*d+1)}, {v(PD+4*i+d)}, {sSELHI}, {"0" if i == 0 else v(V+2*d+1)}')
for k in range(4): p(f'v_permlane32_swap_b32 {v(V+k)}, {v(V+4+k)}')
for k in range(4): p(f'v_add_f32 {v(V+k)}, {v(V+k)}, {v(V+4+k)}')
p(f'v_permlane16_swap_b32 {v(V)}, {v(V+2)}')
p(f'v_permlane16_swap_b32 {v(V+1)}, {v(V+3)}')
p(f'v_add_f32 {v(V)}, {v(V)}, {v(V+2)}')
p(f'v_add_f32 {v(V+1)}, {v(V+1)}, {v(V+3)}')
p(f's_branch {ldone}')
p(f'{lzz}:')
p(f'v_lshlrev_b32 {v(V)}, 16, {v(PD)}')
p(f'v_and_b32 {v(V+1)}, 0xffff0000, {v(PD)}')
for rot in (8, 4, 2, 1):
    p(f'v_add_f32_dpp {v(V)}, {v(V)}, {v(V)} row_ror:{rot} row_mask:0xf bank_mask:0xf')
    p(f'v_add_f32_dpp {v(V+1)}, {v(V+1)}, {v(V+1)} row_ror:{rot} row_mask:0xf bank_mask:0xf')
p(f'{ldone}:')
p(f'v_cvt_pk_bf16_f32 {v(V)}, {v(V)}, {v(V+1)}')
mode_store(lambda f: [f'buffer_store_dword {v(V)}, {vZ}, {srd(sWS)}, {sFST} offen{f}'])
p(f's_add_u32 {sT0}, {sLAYER}, 1')
vm.drain()
flag_store(sFKo, sT0)
lg.drain()
ts('f_pub')
barrier()
if OPT['STOP'] == 'A1': p('s_branch L_end')
poll(vFLG, sFWp, sVAL)
for i in range(16): aload(vr(AF + 4 * i, 4), sPQn, i, ('pq', i))
p(f's_add_u32 {sT0}, {sLAYER}, 1')
p(f'v_lshlrev_b32 v19, 2, {vLANE}')
poll('v19', sFKp, sT0)
ts('a2_polled')
FR = AF + 64
for i in range(NB): aload(vr(FR + 4 * i, 4), sFn, i, ('f', i))
p(f's_mul_i32 {sT0}, {sW}, {16*2752}')
p(f's_mul_i32 {sT1}, {sW}, 3072')
NUM = [ACC[2], T[0]]
OF = [BF + 24, BF + 28]
def nbuf(s, b): return BF + 4 * (2 * (s % 3) + b)
def wo_rd(s):
    if s < 16:
        for b, a in ((0, vN0), (1, vN1)):
            tr(vr(nbuf(s, b), 2), a, s * 2048); tr(vr(nbuf(s, b) + 2, 2), a, s * 2048 + 1024)
            lg.issue((s, b)); lg.issue((s, b))
def num(i):
    vm.wait(('f', i))
    p(f'{MF} {vr(NUM[i%2],16)}, {vr(FR+4*i,4)}, {vr(AF+4*i,4)}, 0')
w1q = [(16 + 4 * gi, q) for gi in range(4) for q in range(3)]
def a2_bg(i):
    if i + NB < 16: aload(vr(FR + 4 * (i + NB), 4), sFn, i + NB, ('f', i + NB))
    else:
        for _ in range(2):
            if w1q:
                G, q = w1q.pop(0)
                dma(sW1, vD1[q], (sT0, G * 16 * 2752), (sT1, G * 3072 + q * 1024))
def wo_mm(i, b):
    lg.wait((i, b))
    p(f'{MF} {vr(ACC[b],16)}, {vr(nbuf(i,b),4)}, {vr(OF[i%2],4)}, {"0" if i == 0 else vr(ACC[b],16)}')
wo_rd(0); wo_rd(1)
num(0)
for i in range(17):
    if i + 1 < 16: num(i + 1)
    if i < 16:
        a2_bg(i)
        N = NUM[i % 2]; nb_ = N if i % 2 == 0 else N + 8; den = N + 8 if i % 2 == 0 else N
        p(f'v_add_f32 v18, s82, {v(den)}')
        p('v_rcp_f32 v18, v18')
    if i >= 1: wo_mm(i - 1, 0)
    if i < 16:
        for k in range(8): p(f'v_mul_f32 {v(nb_+k)}, v18, {v(nb_+k)}')
    if i >= 1:
        wo_mm(i - 1, 1)
        wo_rd(i + 1)
    if i < 16:
        for k in range(4): p(f'v_cvt_pk_bf16_f32 {v(OF[i%2]+k)}, {v(nb_+2*k)}, {v(nb_+2*k+1)}')
assert not w1q
ts('a2_done')

def narrow_epilogue(last):
    barrier()
    if not last:
        lskip = newlab('notail')
        p(f's_cmp_eq_u32 {sLAYER}, 0')
        p(f's_cbranch_scc0 {lskip}')
        p(f's_and_b32 {sT0}, {sW}, 1')
        p(f's_mul_i32 {sT0}, {sT0}, {24*1024}')
        p(f's_mul_i32 {sT1}, {sKH}, {688*1024}')
        p(f's_add_u32 {sT0}, {sT0}, {sT1}')
        p(f's_mul_i32 {sT1}, {sW}, 3072')
        for i in range(3): dma(sW2, vDN, (sT0, 640 * 1024 + i * 8192), (sT1, TAILB + i * 1024))
        p(f'{lskip}:')
    p(f's_lshl_b32 {sT0}, {sW}, 12')
    p(f's_add_u32 {sT0}, {sT0}, {XCH}')
    p(f'v_add_u32 v28, {sT0}, {vL16}')
    p(f'v_xor_b32 v29, 8192, v28')
    for q in range(4): p(f'ds_write_b128 v28, {vr(ACC[1]+4*q,4)} offset:{q*1024}')
    for k in range(8): p(f'v_accvgpr_read_b32 {v(BF+k)}, a{aRES+k}')
    for k in range(8):
        p(f'v_lshlrev_b32 {v(ACC[2]+2*k)}, 16, {v(BF+k)}')
        p(f'v_and_b32 {v(ACC[2]+2*k+1)}, 0xffff0000, {v(BF+k)}')
    for k in range(8): p(f'v_pk_add_f32 {vr(ACC[0]+2*k,2)}, {vr(ACC[0]+2*k,2)}, {vr(ACC[2]+2*k,2)}')
    lg.drain()
    barrier()
    for q in range(4): p(f'ds_read_b128 {vr(ACC[1]+4*q,4)}, v29 offset:{q*1024}')
    for q in range(4):
        p(f's_waitcnt lgkmcnt({3-q})')
        for k in (2 * q, 2 * q + 1):
            p(f'v_pk_add_f32 {vr(ACC[0]+2*k,2)}, {vr(ACC[0]+2*k,2)}, {vr(ACC[1]+2*k,2)}')
            p(f'v_cvt_pk_bf16_f32 {v(BF+k)}, {v(ACC[0]+2*k)}, {v(ACC[0]+2*k+1)}')
    if last:
        lnext = newlab('notlast')
        p(f's_cmp_eq_u32 {sLAYER}, 1')
        p(f's_cbranch_scc0 {lnext}')
        p(f'v_and_b32 v28, 31, {vLANE}')
        p(f'v_lshrrev_b32 v29, 5, {vLANE}')
        p(f'v_lshlrev_b32 v28, 10, v28')
        p(f'v_lshl_add_u32 v28, v29, 4, v28')
        p(f'v_permlane32_swap_b32 {v(BF)}, {v(BF+2)}'); p(f'v_permlane32_swap_b32 {v(BF+1)}, {v(BF+3)}')
        p(f'v_permlane32_swap_b32 {v(BF+4)}, {v(BF+6)}'); p(f'v_permlane32_swap_b32 {v(BF+5)}, {v(BF+7)}')
        p(f'buffer_store_dwordx4 {vr(BF,4)}, v28, {srd(sOUT)}, {sOUTo} offen')
        p(f'buffer_store_dwordx4 {vr(BF+4,4)}, v28, {srd(sOUT)}, {sOUTo} offen offset:32')
        p('s_branch L_fin')
        p(f'{lnext}:')
    mode_store(lambda f: [f'buffer_store_dwordx4 {vr(BF,4)}, {vL16}, {srd(sWS)}, {sXFn} offen{f}',
                          f'buffer_store_dwordx4 {vr(BF+4,4)}, {vL16}, {srd(sWS)}, {sXFn} offen offset:1024{f}'])
    for k in range(8):
        p(f'v_dot2_f32_bf16 v28, {v(BF+k)}, {sONES}, {"0" if k == 0 else "v28"}')
        p(f'v_dot2_f32_bf16 v29, {v(BF+k)}, {v(BF+k)}, {"0" if k == 0 else "v29"}')
    p('v_permlane32_swap_b32 v28, v29')
    p('v_add_f32 v28, v28, v29')
    mode_store(lambda f: [f'buffer_store_dword v28, {vSTA}, {srd(sWS)}, {sSTn} offen{f}'])
    for k in range(8): p(f'v_accvgpr_write_b32 a{aRES+k}, {v(BF+k)}')
    vm.drain()

narrow_epilogue(False)
flag_store(sFNo, sVAL)
ts('x1_pub')
barrier()
if OPT['STOP'] == 'A2': p('s_branch L_end')
lskip = newlab('nocs1')
p(f's_cmp_eq_u32 {sLAYER}, 0')
p(f's_cbranch_scc0 {lskip}')
p(f's_mul_i32 {sT0}, {sKH}, {6144-32768+0x100000000}')
p(f's_add_u32 {sT0}, {sT0}, 32768')
p(f'v_add_u32 v28, {sT0}, {vN0}'); p(f'v_add_u32 v29, {sT0}, {vN1}')
for s in range(3):
    for b, a in ((0, 'v28'), (1, 'v29')):
        tr(ar(aTAIL + 8 * s + 4 * b, 2), a, s * 2048); tr(ar(aTAIL + 8 * s + 4 * b + 2, 2), a, s * 2048 + 1024)
p('s_waitcnt lgkmcnt(0)')
p(f's_mul_i32 {sT0}, {sW}, {8*3072}')
p(f'v_add_u32 v30, {sT0}, {vW1}')
lg.clear()
def rd(s, b, dst):
    tr(vr(dst, 2), 'v30', s * 3072 + b * 64); tr(vr(dst + 2, 2), 'v30', s * 3072 + b * 64 + 1536)
def mm(s, b, fr):
    p(f'{MF} {vr(ACC[b],16)}, {ONESF}, {fr}, {"0" if s == 0 else vr(ACC[b],16)}')
gemm_loop(8, 3, rd, mm, lambda s: None)
p(f's_mul_i32 {sT0}, {sW}, 768')
p(f's_add_u32 {sT0}, {sT0}, {CS1S}')
p(f'v_lshlrev_b32 v31, 2, {vLANE}')
p(f'v_add_u32 v30, {sT0}, v31')
p(f'v_add_u32 v31, {CS1S}, v31')
for b in range(3): p(f'ds_write_b32 v30, {v(ACC[b])} offset:{b*256}')
p('s_waitcnt lgkmcnt(0)')
barrier()
for wv in range(4):
    for b in range(3): p(f'ds_read_b32 {v(BF+3*wv+b)}, v31 offset:{wv*768+b*256}')
p('s_waitcnt lgkmcnt(0)')
for b in range(3):
    p(f'v_add_f32 {v(BF+b)}, {v(BF+b)}, {v(BF+3+b)}')
    p(f'v_add_f32 {v(BF+6+b)}, {v(BF+6+b)}, {v(BF+9+b)}')
for b in range(3):
    p(f'v_add_f32 {v(BF+b)}, {v(BF+b)}, {v(BF+6+b)}')
for b in range(3): make_cs_frag(CS1 + b, v(BF + b))
barrier()
p(f'{lskip}:')
lg.clear()
poll(vFLG, sFNp, sVAL)
ts('b1_polled')
for s in range(NB): aload(af(s), sXFw, s, ('a', s))
p(f'v_add_u32 v19, 49152, {vW1}')
def rd(s, b, dst):
    a, o = (vW1, s * 3072) if s < 16 else ('v19', (s - 16) * 3072)
    tr(vr(dst, 2), a, o + b * 64); tr(vr(dst + 2, 2), a, o + b * 64 + 1536)
def mm(s, b, fr):
    p(f'{MF} {vr(ACC[b],16)}, {fr}, {af(s)}, {"0" if s == 0 else vr(ACC[b],16)}')
w2q = list(range(16))
def ex(s, b):
    if b == 0:
        if s + NB < 32: aload(af(s + NB), sXFw, s + NB, ('a', s + NB))
        elif s + NB == 32: load_stats(T[0])
    if b == 1 and s % 2 == 1 and w2q:
        i = w2q.pop(0); dma(sW2, vDN, (sW2a, i * 8192), (sMw16, i * 1024))
gemm_loop(32, 3, rd, mm, lambda s: vm.wait(('a', s)), ex)
assert not w2q
vm.wait('stat')
sum_stats(T[0] )
for b in range(3):
    p(f'{MF} {vr(ACC[b],16)}, {csf(CS1+b)}, {vr(MUF,4)}, {vr(ACC[b],16)}')
ts('b1_done')
barrier()
for i in range(24): dma(sW2, vDN, (sW2b, i * 8192), (sMw24, i * 1024))
p(f'v_mul_f32 v19, s80, {vS}')
p('v_sub_f32 v19, 0, v19')
p(f'v_mov_b32 v18, {vS}')
lend = newlab('b1e')
for b in range(3):
    if b == 2:
        p(f's_cmp_eq_u32 {sNBLK}, 3')
        p(f's_cbranch_scc0 {lend}')
    for m in range(8):
        r0 = ACC[b] + 2 * m; u = T[2 * (m % 4)]
        p(f'v_pk_mul_f32 {vr(u,2)}, {vr(r0,2)}, v[18:19] op_sel:[0,1] op_sel_hi:[1,1]')
        p(f'v_pk_mul_f32 {vr(r0,2)}, {vr(r0,2)}, v[18:19] op_sel_hi:[1,0]')
        p(f'v_exp_f32 {v(u)}, {v(u)}')
        p(f'v_exp_f32 {v(u+1)}, {v(u+1)}')
        p(f'v_pk_add_f32 {vr(u,2)}, {vr(u,2)}, {sONE2}')
        p(f'v_rcp_f32 {v(u)}, {v(u)}')
        p(f'v_rcp_f32 {v(u+1)}, {v(u+1)}')
        p(f'v_pk_mul_f32 {vr(r0,2)}, {vr(r0,2)}, {vr(u,2)}')
        p(f'v_cvt_pk_bf16_f32 {v(BF+8*b+m)}, {v(r0)}, {v(r0+1)}')
    p(f's_add_u32 {sT0}, {sHw}, {b*2048}')
    mode_store(lambda f: [f'buffer_store_dwordx4 {vr(BF+8*b,4)}, {vL16}, {srd(sWS)}, {sT0} offen{f}',
                          f'buffer_store_dwordx4 {vr(BF+8*b+4,4)}, {vL16}, {srd(sWS)}, {sT0} offen offset:1024{f}'])
p(f'{lend}:')
p(f's_add_u32 {sVAL}, {sVAL}, 1')
vm.drain()
flag_store(sFWo, sVAL)
ts('h_pub')
barrier()
if OPT['STOP'] == 'B1': p('s_branch L_end')
poll(vFLG, sFWp, sVAL)
ts('b2_polled')
for s in range(NB): aload(af(s), sHn, s, ('a', s))
p(f's_lshl_b32 {sT0}, {sKH}, 14')
p(f's_sub_u32 {sT0}, {sT0}, {R1}')
p(f'v_add_u32 v28, {sT0}, {vN0}'); p(f'v_add_u32 v29, {sT0}, {vN1}')
def rd(s, b, dst):
    a, o = ((vN0, vN1)[b], s * 2048) if s < 16 else (('v28', 'v29')[b], (s - 16) * 2048)
    tr(vr(dst, 2), a, o); tr(vr(dst + 2, 2), a, o + 1024)
def mm(s, b, fr):
    if fr is None: fr = ar(aTAIL + 8 * (s - 40) + 4 * b, 4)
    p(f'{MF} {vr(ACC[b],16)}, {fr}, {af(s)}, {"0" if s == 0 else vr(ACC[b],16)}')
def ex(s, b):
    if b == 0 and s + NB < 43: aload(af(s + NB), sHn, s + NB, ('a', s + NB))
gemm_loop(43, 2, rd, mm, lambda s: vm.wait(('a', s)), ex, agpr_from=40)
ts('b2_done')
narrow_epilogue(True)
flag_store(sFNo, sVAL)
ts('x2_pub')
p(f's_lshl_b32 {sT0}, {sW}, 14')
p(f'v_add_u32 v30, {sT0}, {vL16}')
for i in range(16): p(f'ds_write_b128 v30, {ar(aPARK+4*i,4)} offset:{i*1024}')
p(f's_lshl_b32 {sT2}, {sW}, 13')
p(f's_add_u32 {sT2}, {sT2}, {QB_}')
p(f'v_add_u32 v28, {sT2}, {vL16}')
for i in range(8): p(f'ds_write_b128 v28, {ar(aPARK+64+4*i,4)} offset:{i*1024}')
p(f'v_lshrrev_b32 v29, 5, {vLANE}')
p('v_lshlrev_b32 v29, 8, v29')
p(f'v_sub_u32 {vQA}, {vQA}, v29')
p(f'v_add_u32 {vQB}, 512, {vQA}')
p(f's_mov_b32 {sLAYER}, 1')
p('s_waitcnt lgkmcnt(0)')
barrier()
if OPT['STOP'] == 'B2': p('s_branch L_end')
p('s_branch L_kv1')
p('L_fin:')
if OPT['TS']:
    ts('end')
    p('s_lshl_b32 s3, s2, 2')
    p(f's_add_u32 s3, s3, {sW}')
    p('s_lshl_b32 s3, s3, 8')
    p(f's_add_u32 s3, s3, {TSB}')
    p('s_mov_b64 exec, 1')
    for i in range(48):
        p(f'v_accvgpr_read_b32 v18, a{208+i}')
        p(f'buffer_store_dword v18, off, {srd(sWS)}, s3 offset:{4*i}')
    p('s_mov_b64 exec, -1')
p('L_end:')
p('s_endpgm')
p('L_codeend:')

body = p.finalize()
hdr = open(os.path.join(os.path.dirname(os.path.abspath(__file__)), 'header.txt')).read()
out = hdr + f'''; @launch grid=(256,1,1) block=(256,1,1) lds=163840
.amdgcn_target "amdgcn-amd-amdhsa--gfx950"
.text
.globl {KNAME}
.p2align 8
.type {KNAME},@function
{KNAME}:
''' + '\n'.join(('' if l.endswith(':') else '    ') + l for l in body) + f'''
.section .rodata,"a"
.p2align 6
.amdhsa_kernel {KNAME}
  .amdhsa_next_free_vgpr 512
  .amdhsa_next_free_sgpr 102
  .amdhsa_accum_offset 256
  .amdhsa_group_segment_fixed_size 0
  .amdhsa_kernarg_size 72
  .amdhsa_user_sgpr_count 2
  .amdhsa_user_sgpr_kernarg_segment_ptr 1
  .amdhsa_system_sgpr_workgroup_id_x 1
.end_amdhsa_kernel
'''
open(sys.argv[1], 'w').write(out)
json_names = TSNAMES
open(sys.argv[1] + '.ts', 'w').write('\n'.join(TSNAMES))
print('lines', len(body), 'nops', p.nops)
```
